```python
import torch

def _softmax(x, axis=-1):
    return torch.softmax(x, dim=axis)
def _gelu(x):
    return torch.nn.functional.gelu(x, approximate="tanh")
def _silu(x):
    return torch.nn.functional.silu(x)
def _sigmoid(x):
    return torch.sigmoid(x)
def _layernorm(x, axis=-1, eps=1e-5):
    m = x.mean(dim=axis, keepdim=True)
    v = x.var(dim=axis, keepdim=True, unbiased=False)
    return (x - m) / torch.sqrt(v + eps)
def _scatter_add(tgt, idx, src, axis=0):
    return tgt.clone().index_add_(axis, idx, src)
def _segment_sum(src, seg, n):
    out = torch.zeros((n,) + src.shape[1:], dtype=src.dtype)
    return out.index_add_(0, seg, src)
def _pad(x, pw):
    flat = tuple(v for pair in reversed(pw) for v in pair)
    return torch.nn.functional.pad(x, flat)

kernel_name = 'gated_mix__ssm_conv_s5__mixer_channel_mlp__prompt'

def setup_inputs():

    _w = (lambda a: (lambda t: t.to(torch.bfloat16) if t.is_floating_point() else t)(torch.as_tensor(a)))
    def _A_setup():
        B, S, D = 1, 2048, 1024
        P = D
        Lambda_re = -0.5 * (lambda _x: torch.exp(torch.as_tensor(_x)))((lambda *s: torch.randn(*s, dtype=torch.bfloat16) * 0.4)(P))
        Lambda_im = (lambda *s: torch.randn(*s, dtype=torch.bfloat16) * 0.8)(P) * 1.0
        B_re = (lambda *s: torch.randn(*s, dtype=torch.bfloat16) * 0.8)(P, D) * (D ** -0.5)
        B_im = (lambda *s: torch.randn(*s, dtype=torch.bfloat16) * 0.4)(P, D) * (D ** -0.5)
        C_re = (lambda *s: torch.randn(*s, dtype=torch.bfloat16) * 0.8)(D, P) * (P ** -0.5)
        C_im = (lambda *s: torch.randn(*s, dtype=torch.bfloat16) * 0.8)(D, P) * (P ** -0.5)
        log_dt = (lambda *s: torch.randn(*s, dtype=torch.bfloat16) * 0.4)(P) * 0.3 - 2.0
        Dskip = (lambda *s: torch.randn(*s, dtype=torch.bfloat16) * 0.1)(D)
        return {
            "x": _w((lambda *s: torch.randn(*s, dtype=torch.bfloat16) * 0.05)(B, S, D)),
            "Lambda_re": _w(Lambda_re),
            "Lambda_im": _w(Lambda_im),
            "B_re": _w(B_re),
            "B_im": _w(B_im),
            "C_re": _w(C_re),
            "C_im": _w(C_im),
            "log_dt": _w(log_dt),
            "Dskip": _w(Dskip),
        }
    _A_in = _A_setup()

    def _B_setup():
        B, S, D, F = 1, 2048, 1024, 3584
        return {
            "x": _w((lambda *s: torch.randn(*s, dtype=torch.bfloat16) * 0.05)(B, S, D)),
            "w1": _w((lambda *s: torch.randn(*s, dtype=torch.bfloat16) * 0.8)(D, F) * (D ** -0.5)),
            "b1": _w((lambda *s: torch.randn(*s, dtype=torch.bfloat16) * 0.2)(F)),
            "w2": _w((lambda *s: torch.randn(*s, dtype=torch.bfloat16) * 0.05)(F, D) * (F ** -0.5)),
            "b2": _w((lambda *s: torch.randn(*s, dtype=torch.bfloat16) * 0.05)(D)),
        }
    _B_in = _B_setup()

    return {
        "A_x": _A_in["x"],
        "A_Lambda_re": _A_in["Lambda_re"],
        "A_Lambda_im": _A_in["Lambda_im"],
        "A_B_re": _A_in["B_re"],
        "A_B_im": _A_in["B_im"],
        "A_C_re": _A_in["C_re"],
        "A_C_im": _A_in["C_im"],
        "A_log_dt": _A_in["log_dt"],
        "A_Dskip": _A_in["Dskip"],
        "B_x": _B_in["x"],
        "B_w1": _B_in["w1"],
        "B_b1": _B_in["b1"],
        "B_w2": _B_in["w2"],
        "B_b2": _B_in["b2"],
        "gate_w": _w((lambda *s: torch.randn(*s, dtype=torch.bfloat16) * 0.05)(1024) * 16.0),
    }

def reference(A_x, A_Lambda_re, A_Lambda_im, A_B_re, A_B_im, A_C_re, A_C_im, A_log_dt, A_Dskip, B_x, B_w1, B_b1, B_w2, B_b2, gate_w):
    def _A_ref(x, Lambda_re, Lambda_im, B_re, B_im, C_re, C_im, log_dt, Dskip):
        Bsz, L, H = x.shape
        Lam = Lambda_re + 1j * Lambda_im
        Bmat = B_re + 1j * B_im
        Cmat = C_re + 1j * C_im
        dt = torch.exp(log_dt)
        Lam_bar = torch.exp(dt * Lam)
        B_bar = ((Lam_bar - 1.0) / Lam)[:, None] * Bmat
        Bu = torch.einsum("bld,pd->blp", x + 0j, B_bar)
        h = torch.zeros_like(Bu[:, 0, :])
        hs = []
        for t in range(L):
            h = Lam_bar[None, :] * h + Bu[:, t, :]
            hs.append(h)
        hseq = torch.stack(hs, 1)
        y = 2.0 * torch.einsum("blp,dp->bld", hseq, Cmat).real + x * Dskip[None, None, :]
        return y

    def _B_ref(x, w1, b1, w2, b2):
        y = _layernorm(x, axis=-1)
        h = _gelu(torch.einsum("bsd,df->bsf", y, w1) + b1)
        return torch.einsum("bsf,fd->bsd", h, w2) + b2

    x = A_x
    g = _sigmoid((x * gate_w).sum(-1, keepdims=True))
    a = _A_ref(x, A_Lambda_re, A_Lambda_im, A_B_re, A_B_im, A_C_re, A_C_im, A_log_dt, A_Dskip)
    b = _B_ref(x, B_w1, B_b1, B_w2, B_b2)
    return g * a + (1 - g) * b
```

```python
class Asm:
    def __init__(self):
        self.L = []
        self.lbl = 0
    def __call__(self, s):
        for line in s.split("\n"):
            line = line.strip()
            if line: self.L.append("    " + line if not line.endswith(":") else line)
    def label(self, name): self.L.append(name + ":")
    def comment(self, s): self.L.append("    ; " + s)
    def text(self): return "\n".join(self.L) + "\n"

def vr(b, n=4): return f"v[{b}:{b+n-1}]" if n > 1 else f"v{b}"
def sr(b, n=4): return f"s[{b}:{b+n-1}]" if n > 1 else f"s{b}"

def srd(a, d, base, nbytes, add=0):
    if add:
        a(f"s_add_u32 s{d}, s{base}, {add}")
        a(f"s_addc_u32 s{d+1}, s{base+1}, 0")
        a(f"s_and_b32 s{d+1}, s{d+1}, 0xffff")
    else:
        a(f"s_mov_b32 s{d}, s{base}")
        a(f"s_and_b32 s{d+1}, s{base+1}, 0xffff")
    a(f"s_mov_b32 s{d+2}, {nbytes}")
    a(f"s_mov_b32 s{d+3}, 0x20000")

class LgkmQ:
    def __init__(self, a):
        self.a = a; self.q = []
    def issue(self, tag): self.q.append(tag)
    def need(self, tags):
        idx = -1
        for i, t in enumerate(self.q):
            if t in tags: idx = i
        if idx < 0: return
        n = len(self.q) - 1 - idx
        self.a(f"s_waitcnt lgkmcnt({min(n,15)})")
        if n > 15: n = 15
        self.q = self.q[len(self.q)-n:] if n else []
    def drain(self):
        if self.q: self.a("s_waitcnt lgkmcnt(0)")
        self.q = []

def kdesc(name, vgpr=256, sgpr=102):
    return f""".p2align 6
.amdhsa_kernel {name}
  .amdhsa_next_free_vgpr {vgpr}
  .amdhsa_next_free_sgpr {sgpr}
  .amdhsa_accum_offset {(vgpr+3)//4*4}
  .amdhsa_group_segment_fixed_size 0
  .amdhsa_kernarg_size 144
  .amdhsa_user_sgpr_count 2
  .amdhsa_user_sgpr_kernarg_segment_ptr 1
  .amdhsa_system_sgpr_workgroup_id_x 1
.end_amdhsa_kernel
"""

NKB = 176
WS_AP   = 0
AP_BYTES = 128*NKB*1024
WS_G    = 0x1600000
WS_PART = 0x1800000
WS_FLAG2= 0x2000000
WS_STAT = 0x2100000
WS_CSUM = 0x2200000
WS_AGG  = 0x2300000
WS_BYTES= 0x2400000
KA = dict(x=0, lre=8, lim=16, bre=24, bim=32, cre=40, cim=48, logdt=56, dskip=64, bx=72, w1=80, b1=88, w2=96, b2=104, gw=112, out=120, dbg=128, ws=136)
```

```python
from common import *
import math, struct

def f2u(f): return struct.unpack("<I", struct.pack("<f", f))[0]
XSL = 40960
W1B = 122880
WSL = 7168
TAB = 158720
EP = 40960
AGG = EP + 32768
ECAR = EP + 36864
LOG2E = 1.4426950408889634

def gen_k1(a, name="k1_kernel", dbg=False):
    S_X, S_B, S_W1, S_WS, S_DBG, S_A1, S_A2, S_A3 = 36, 40, 44, 48, 52, 56, 60, 64
    sW, sI, sJ, sT0, sT1, sT2, sT3, sCNT, sODD = 68, 69, 70, 71, 72, 73, 74, 75, 76
    sXS, sWS_, sDX, sDW = 77, 78, 79, 80
    sC = 82
    sSO = 90
    def stamp(i, real=False):
        if dbg: a(f"{'s_memrealtime' if real else 's_memtime'} s[{4+2*i}:{5+2*i}]\ns_waitcnt lgkmcnt(0)")
    a(f".globl {name}\n.p2align 8\n.type {name},@function")
    a.label(name)
    a(f"s_cmp_ge_u32 s2, 256\ns_cbranch_scc1 L_{name}_end")
    if dbg: a("s_memtime s[94:95]\ns_memrealtime s[96:97]")
    a("s_load_dwordx8 s[4:11], s[0:1], 0\ns_load_dwordx8 s[12:19], s[0:1], 32\ns_load_dwordx8 s[20:27], s[0:1], 80")
    a("s_load_dwordx2 s[28:29], s[0:1], 112\ns_load_dwordx4 s[32:35], s[0:1], 128")
    a("v_and_b32 v1, 63, v0\nv_lshrrev_b32 v2, 6, v0\ns_nop 0")
    a(f"v_readfirstlane_b32 s{sW}, v2")
    a(f"s_and_b32 s{sT0}, s2, 7\ns_lshr_b32 s{sT1}, s2, 3")
    a(f"s_and_b32 s{sI}, s{sT0}, 1\ns_lshl_b32 s{sI}, s{sI}, 2\ns_and_b32 s{sT2}, s{sT1}, 3\ns_add_u32 s{sI}, s{sI}, s{sT2}")
    a(f"s_lshr_b32 s{sJ}, s{sT0}, 1\ns_lshl_b32 s{sJ}, s{sJ}, 3\ns_lshr_b32 s{sT2}, s{sT1}, 2\ns_add_u32 s{sJ}, s{sJ}, s{sT2}")
    a(f"s_and_b32 s{sODD}, s{sJ}, 1")
    a("v_and_b32 v2, 15, v1\nv_lshrrev_b32 v3, 4, v1")
    a("s_waitcnt lgkmcnt(0)")
    srd(a, S_X, 4, 2048*2048)
    srd(a, S_W1, 20, 1024*7168)
    srd(a, S_WS, 34, WS_BYTES)
    a(f"s_cmp_ge_u32 s{sW}, 4\ns_cbranch_scc1 L_{name}_loader")

    def ssm_consts(vch, T, outs):
        srd(a, S_A1, 6, 2048); srd(a, S_A2, 8, 2048); srd(a, S_A3, 18, 2048)
        for c, _ in enumerate(outs):
            a(f"buffer_load_ushort v{T+8*c}, v{vch}, {sr(S_A1)}, 0 offen offset:{32*c}")
            a(f"buffer_load_ushort v{T+8*c+1}, v{vch}, {sr(S_A2)}, 0 offen offset:{32*c}")
            a(f"buffer_load_ushort v{T+8*c+2}, v{vch}, {sr(S_A3)}, 0 offen offset:{32*c}")
    def ssm_math(T, outs):
        L = []
        for c, (lr, li, cr, ci) in enumerate(outs):
            t = T+8*c
            L += [f"v_lshlrev_b32 v{t}, 16, v{t}", f"v_lshlrev_b32 v{t+1}, 16, v{t+1}", f"v_lshlrev_b32 v{t+2}, 16, v{t+2}",
                  f"v_mul_f32 v{t+2}, {hex(f2u(LOG2E))}, v{t+2}", f"v_exp_f32 v{t+2}, v{t+2}", "s_nop 1",
                  f"v_cvt_pk_bf16_f32 v{t+2}, v{t+2}, v{t+2}", f"v_lshlrev_b32 v{t+2}, 16, v{t+2}",
                  f"v_mul_f32 v{t+3}, v{t+2}, v{t}", f"v_mul_f32 v{t+4}, v{t+2}, v{t+1}",
                  f"v_mul_f32 v{t+3}, {hex(f2u(LOG2E))}, v{t+3}", f"v_mul_f32 v{t+4}, {hex(f2u(1/(2*math.pi)))}, v{t+4}",
                  f"v_exp_f32 v{t+3}, v{t+3}", f"v_cos_f32 v{t+5}, v{t+4}", f"v_sin_f32 v{t+6}, v{t+4}", "s_nop 1",
                  f"v_mul_f32 v{lr}, v{t+3}, v{t+5}", f"v_mul_f32 v{li}, v{t+3}, v{t+6}"]
            if cr is not None:
                L += [f"v_mul_f32 v{t+2}, v{t}, v{t}", f"v_fmac_f32 v{t+2}, v{t+1}, v{t+1}", f"v_rcp_f32 v{t+2}, v{t+2}",
                  f"v_add_f32 v{t+3}, -1.0, v{lr}",
                  f"v_mul_f32 v{t+4}, v{t+3}, v{t}", f"v_fmac_f32 v{t+4}, v{li}, v{t+1}",
                  f"v_mul_f32 v{t+5}, v{li}, v{t}", f"v_fma_f32 v{t+5}, -v{t+3}, v{t+1}, v{t+5}",
                  f"v_mul_f32 v{cr}, v{t+4}, v{t+2}", f"v_mul_f32 v{ci}, v{t+5}, v{t+2}"]
        return L

    vX, vB, vW, vW6 = 4, 6, 8, 9
    LAM, COEF = 10, 14
    XF, WF, ACC = 32, 64, 80
    JUNK = 31
    def acc(b, blk): return ACC + (blk*4+b)*4
    a(f"s_lshl_b32 s{sT0}, s{sJ}, 6\nv_lshlrev_b32 v18, 1, v2\nv_add_u32 v18, s{sT0}, v18")
    outs = [(LAM, LAM+1, COEF, COEF+1), (LAM+2, LAM+3, COEF+2, COEF+3)]
    ssm_consts(18, 32, outs)
    srd(a, S_B, 10, 2048*1024); srd(a, S_DBG, 12, 2048*1024)
    a(f"s_lshl_b32 s{sT0}, s2, 2\ns_add_u32 s{sT0}, s{sT0}, s{sW}")
    a(f"v_lshlrev_b32 v18, 7, v1\nv_and_b32 v19, 31, v1\nv_lshlrev_b32 v19, 7, v19\nv_lshlrev_b32 v20, 7, v2")
    a(f"s_mul_i32 s{sT1}, s{sT0}, {56*128}\ns_lshl_b32 s{sT2}, s{sT0}, 12\ns_lshl_b32 s{sT3}, s{sT0}, 11")
    a(f"buffer_load_dword v{JUNK}, v19, {sr(S_X)}, s{sT2} offen")
    a(f"buffer_load_dword v{JUNK}, v18, {sr(S_W1)}, s{sT1} offen")
    a(f"buffer_load_dword v{JUNK}, v20, {sr(S_B)}, s{sT3} offen")
    a(f"buffer_load_dword v{JUNK}, v20, {sr(S_DBG)}, s{sT3} offen")
    a(f"v_and_b32 v19, 7, v2\nv_xor_b32 v20, v3, v19\nv_lshlrev_b32 v20, 4, v20\nv_lshlrev_b32 v21, 7, v2\nv_add_u32 v20, v20, v21")
    a(f"v_add_u32 v{vB}, 0x8000, v20\nv_xor_b32 v{vB+1}, 64, v{vB}")
    a(f"s_lshl_b32 s{sT0}, s{sW}, 13\nv_add_u32 v{vX}, s{sT0}, v20\nv_xor_b32 v{vX+1}, 64, v{vX}")
    a(f"v_lshrrev_b32 v19, 2, v1\nv_mul_u32_u24 v19, 224, v19\nv_and_b32 v20, 3, v1\nv_lshlrev_b32 v20, 3, v20\nv_add_u32 v19, v19, v20\nv_add_u32 v19, {W1B}, v19")
    a(f"s_lshl_b32 s{sT0}, s{sODD}, 5\nv_add_u32 v{vW}, s{sT0}, v19")
    a(f"s_cmp_eq_u32 s{sODD}, 0\ns_cselect_b32 s{sT0}, 192, 0\nv_add_u32 v{vW6}, s{sT0}, v19")
    for r in range(176): a(f"v_mov_b32 v{ACC+r}, 0")
    a(f"s_mov_b32 s{sXS}, 0\ns_mov_b32 s{sWS_}, 0\ns_mov_b32 s98, {XSL}\ns_mov_b32 s99, {WSL}")
    a("s_waitcnt vmcnt(4)")
    for s in ssm_math(32, outs): a(s)
    q = LgkmQ(a)
    def rd_x(par, kk):
        return [(('X', par, b), f"ds_read_b128 {vr(XF+par*16+b*4)}, v{vX+kk} offset:{b*2048}") for b in range(4)]
    def rd_w(seq, blk, kk):
        d = WF + (seq % 4)*4
        if blk < 4: return [(('W', seq % 4), f"ds_read_b128 {vr(d)}, v{vB+kk} offset:{blk*2048}")]
        n = blk-4
        ar, off = (vW, 32*n) if n < 6 else (vW6, 0)
        return [(('Wx', seq % 4), f"ds_read_b64_tr_b16 {vr(d,2)}, v{ar} offset:{off}"),
                (('W', seq % 4), f"ds_read_b64_tr_b16 {vr(d+2,2)}, v{ar} offset:{off+3584}")]
    stamp(1)
    a("s_barrier")
    stamp(2)
    for tag, ins in rd_x(0, 0) + rd_w(0, 0, 0) + rd_w(1, 1, 0) + rd_w(2, 2, 0):
        a(ins); q.issue(tag)
    q.need({('X', 0, 3)})
    a(f"s_mov_b32 s{sCNT}, 8")
    saved = list(q.q)
    a.label(f"L_{name}_loop")
    for u in range(4):
        kk = u & 1; par = u & 1
        for blk in range(11):
            seq = u*11 + blk
            fill = []
            nb = blk + 3
            if nb < 11: fill += [('r',)+r for r in rd_w(seq+3, nb, kk)]
            else: fill += [('r',)+r for r in rd_w(seq+3, nb-11, kk ^ 1)]
            if kk == 1 and blk == 0:
                fill += [('i', f"s_add_u32 s{sXS}, s{sXS}, {XSL}"), ('i', f"s_cmp_eq_u32 s{sXS}, {3*XSL}"),
                         ('i', f"s_cselect_b32 s{sDX}, {(-2*XSL) & 0xffffffff}, s98"), ('i', f"s_cselect_b32 s{sXS}, 0, s{sXS}"),
                         ('i', f"v_add_u32 v{vX}, s{sDX}, v{vX}"), ('i', f"v_add_u32 v{vB}, s{sDX}, v{vB}")]
            if kk == 1 and blk == 1:
                fill += [('i', f"v_add_u32 v{vX+1}, s{sDX}, v{vX+1}"), ('i', f"v_add_u32 v{vB+1}, s{sDX}, v{vB+1}")]
            if 2 <= blk <= 5:
                fill += [('r',)+rd_x(par ^ 1, kk ^ 1)[blk-2]]
            if blk == 8:
                fill += [('i', f"s_add_u32 s{sWS_}, s{sWS_}, {WSL}"), ('i', f"s_cmp_eq_u32 s{sWS_}, {5*WSL}"),
                         ('i', f"s_cselect_b32 s{sDW}, {(-4*WSL) & 0xffffffff}, s99"), ('i', f"s_cselect_b32 s{sWS_}, 0, s{sWS_}"),
                         ('i', f"v_add_u32 v{vW}, s{sDW}, v{vW}"), ('i', f"v_add_u32 v{vW6}, s{sDW}, v{vW6}")]
            fi = 0
            for b in range(4):
                q.need({('X', par, b), ('W', seq % 4)})
                xf, wf = vr(XF+par*16+b*4), vr(WF+(seq % 4)*4)
                if blk < 4: a(f"v_mfma_f32_16x16x32_bf16 {vr(acc(b,blk))}, {xf}, {wf}, {vr(acc(b,blk))}")
                else: a(f"v_mfma_f32_16x16x32_bf16 {vr(acc(b,blk))}, {wf}, {xf}, {vr(acc(b,blk))}")
                k = 0
                while fi < len(fill) and (k < 2 or b == 3):
                    it = fill[fi]; fi += 1; k += 1
                    if it[0] == 'r': a(it[2]); q.issue(it[1])
                    else: a(it[1])
        a("s_barrier")
    assert q.q == saved[len(saved)-len(q.q):], (q.q, saved)
    a(f"s_sub_u32 s{sCNT}, s{sCNT}, 1\ns_cmp_lg_u32 s{sCNT}, 0\ns_cbranch_scc1 L_{name}_loop")
    a("s_waitcnt lgkmcnt(0)")
    stamp(3)
    TK = 32
    a(f"s_lshl_b32 s{sT0}, s{sW}, 8\nv_lshlrev_b32 v18, 2, v2\nv_add_u32 v18, s{sT0}, v18\nv_add_u32 v18, {TAB}, v18")
    for b in range(4):
        for p in range(3):
            a(f"ds_read_b32 v{TK+b*4+p}, v18, offset:{p*1024+b*64}".replace(", offset", " offset"))
    a(f"v_lshlrev_b32 v19, 4, v3\nv_add_u32 v19, {TAB+4096}, v19")
    a("s_nop 7\ns_nop 7")
    def R(h, t): return acc(t >> 2, h) + (t & 3)
    def I(h, t): return acc(t >> 2, 2+h) + (t & 3)
    for t in range(1, 16):
        for h in range(2):
            lr, li = LAM+2*h, LAM+2*h+1
            a(f"v_fmac_f32 v{R(h,t)}, v{lr}, v{R(h,t-1)}\nv_fmac_f32 v{I(h,t)}, v{lr}, v{I(h,t-1)}")
        for h in range(2):
            lr, li = LAM+2*h, LAM+2*h+1
            a(f"v_fma_f32 v{R(h,t)}, -v{li}, v{I(h,t-1)}, v{R(h,t)}\nv_fmac_f32 v{I(h,t)}, v{li}, v{R(h,t-1)}")
    a(f"s_lshl_b32 s{sT0}, s{sW}, 10\nv_lshlrev_b32 v20, 8, v3\nv_lshlrev_b32 v21, 2, v2\nv_add_u32 v20, v20, v21\nv_add_u32 v20, s{sT0}, v20\nv_add_u32 v20, {AGG}, v20")
    for h in range(2):
        a(f"ds_write_b32 v20, v{R(h,15)} offset:{h*64}\nds_write_b32 v20, v{I(h,15)} offset:{128+h*64}")
    a("s_waitcnt lgkmcnt(0)\ns_barrier")
    a(f"s_mul_i32 s{sT0}, s{sJ}, 7\ns_add_u32 s{sT0}, s{sT0}, 1\ns_lshr_b32 s{sT0}, s{sT0}, 1\ns_lshl_b32 s{sT0}, s{sT0}, 10")
    a(f"v_lshlrev_b32 v21, 4, v1\nv_add_u32 v22, s{sT0}, v21")
    a(f"s_add_u32 s{sT1}, s{sT0}, 3072\ns_sub_u32 s{sT2}, s{sT0}, 1016\ns_cmp_eq_u32 s{sODD}, 0\ns_cselect_b32 s{sT1}, s{sT1}, s{sT2}\nv_add_u32 v23, s{sT1}, v21")
    a(f"s_lshr_b32 s{sT1}, s{sJ}, 1\ns_lshl_b32 s{sT1}, s{sT1}, 2\ns_add_u32 s{sT1}, s{sT1}, s{sODD}\ns_add_u32 s{sT1}, s{sT1}, 112\ns_lshl_b32 s{sT1}, s{sT1}, 10\nv_add_u32 v24, s{sT1}, v21")
    a(f"s_lshl_b32 s{sT1}, s{sI}, 4\ns_lshl_b32 s{sT2}, s{sW}, 2\ns_add_u32 s{sT1}, s{sT1}, s{sT2}\ns_mul_i32 s{sSO}, s{sT1}, {NKB*1024}")
    for b in range(1, 4): a(f"s_add_u32 s{sSO+b}, s{sSO+b-1}, {NKB*1024}")
    c0 = math.sqrt(2/math.pi)
    k1c = -2*c0*LOG2E; k2c = -2*c0*0.044715*LOG2E
    a(f"s_mov_b32 s{sC}, {hex(f2u(k1c))}\ns_mov_b32 s{sC+1}, {hex(f2u(k1c))}\ns_mov_b32 s{sC+2}, {hex(f2u(k2c))}\ns_mov_b32 s{sC+3}, {hex(f2u(k2c))}")
    a(f"s_mov_b32 s{sC+4}, 1.0\ns_mov_b32 s{sC+5}, 1.0")
    a(f"v_mov_b32 v26, s{sC}\nv_mov_b32 v27, s{sC}")
    CB = 48
    G = 64
    BL = "op_sel:[0,0,0] op_sel_hi:[0,1,1]"
    BH = "op_sel:[1,0,0] op_sel_hi:[1,1,1]"
    def gelu(b, blks, dst):
        P = []
        for x, n in enumerate(blks):
            for h in range(2): P.append((acc(b, 4+n)+2*h, CB+x*4+2*h, CB+8+x*4+2*h))
        tk = TK+b*4
        for k, (A, cs, b1) in enumerate(P):
            a(f"v_pk_fma_f32 {vr(G+2*k,2)}, {vr(tk,2)}, {vr(cs,2)}, {vr(b1,2)} {BH} neg_lo:[1,0,0] neg_hi:[1,0,0]")
        for k, (A, cs, b1) in enumerate(P):
            a(f"v_pk_fma_f32 {vr(A,2)}, {vr(tk,2)}, {vr(A,2)}, {vr(G+2*k,2)} {BL}")
        for k, (A, cs, b1) in enumerate(P):
            a(f"v_pk_mul_f32 {vr(G+2*k,2)}, {vr(A,2)}, {vr(A,2)}")
        for k, (A, cs, b1) in enumerate(P):
            a(f"v_pk_fma_f32 {vr(G+2*k,2)}, {vr(G+2*k,2)}, {sr(sC+2,2)}, v[26:27]")
        for k, (A, cs, b1) in enumerate(P):
            a(f"v_pk_mul_f32 {vr(G+2*k,2)}, {vr(G+2*k,2)}, {vr(A,2)}")
        for k in range(2*len(P)): a(f"v_exp_f32 v{G+k}, v{G+k}")
        for k, (A, cs, b1) in enumerate(P):
            a(f"v_pk_mul_f32 {vr(A,2)}, {vr(tk+2,2)}, {vr(A,2)} op_sel:[0,0] op_sel_hi:[0,1]")
        for k, (A, cs, b1) in enumerate(P):
            a(f"v_pk_add_f32 {vr(G+2*k,2)}, {vr(G+2*k,2)}, {sr(sC+4,2)}")
        for k in range(2*len(P)): a(f"v_rcp_f32 v{G+k}, v{G+k}")
        a("s_nop 0")
        for k, (A, cs, b1) in enumerate(P):
            a(f"v_pk_mul_f32 {vr(A,2)}, {vr(A,2)}, {vr(G+2*k,2)}")
        for k, (A, cs, b1) in enumerate(P):
            a(f"v_cvt_pk_bf16_f32 v{dst+k}, v{A}, v{A+1}")
    ST = "sc0 sc1"
    for pi, blks in enumerate([(0, 1), (2, 3), (4, 5), (6,)]):
        for x, n in enumerate(blks):
            a(f"ds_read_b128 {vr(CB+x*4)}, v19 offset:{n*64}\nds_read_b128 {vr(CB+8+x*4)}, v19 offset:{448+n*64}")
        a("s_waitcnt lgkmcnt(0)")
        for b in range(4):
            dst = acc(b, 4+blks[0])
            gelu(b, blks, dst)
            if len(blks) == 2: a(f"buffer_store_dwordx4 {vr(dst)}, v22, {sr(S_WS)}, s{sSO+b} offen offset:{pi*1024} {ST}")
            else: a(f"buffer_store_dwordx2 {vr(dst,2)}, v23, {sr(S_WS)}, s{sSO+b} offen {ST}")
    stamp(4)
    a(f"s_lshl_b32 s{sT0}, s{sW}, 8\nv_lshlrev_b32 v18, 4, v3\nv_add_u32 v18, s{sT0}, v18\nv_add_u32 v18, {TAB+3072}, v18")
    G2 = 32
    for b in range(4): a(f"ds_read_b128 {vr(G2+4*b)}, v18 offset:{b*64}")
    L2 = 48
    for h in range(2):
        lr, li = LAM+2*h, LAM+2*h+1
        a(f"v_mul_f32 v{L2+2*h}, v{lr}, v{lr}\nv_fma_f32 v{L2+2*h}, -v{li}, v{li}, v{L2+2*h}\nv_mul_f32 v{L2+2*h+1}, v{lr}, v{li}\nv_add_f32 v{L2+2*h+1}, v{L2+2*h+1}, v{L2+2*h+1}")
    a(f"s_lshl_b32 s{sT0}, s{sW}, 13\ns_add_u32 s{sT0}, s{sT0}, {EP}")
    a(f"v_lshlrev_b32 v25, 5, v2\nv_lshlrev_b32 v28, 3, v3\nv_add_u32 v25, v25, v28\nv_add_u32 v25, s{sT0}, v25")
    a(f"v_lshrrev_b32 v28, 2, v1\nv_and_b32 v28, 3, v28\nv_lshlrev_b32 v29, 3, v3\nv_add_u32 v28, v28, v29\nv_lshlrev_b32 v28, 5, v28\nv_and_b32 v29, 3, v1\nv_lshlrev_b32 v29, 3, v29\nv_add_u32 v28, v28, v29\nv_add_u32 v28, s{sT0}, v28")
    a("s_barrier")
    stamp(5)
    a(f"v_add_u32 v20, {ECAR-AGG}, v20")
    E = 52
    for h in range(2):
        a(f"ds_read_b32 v{E+2*h}, v20 offset:{h*64}\nds_read_b32 v{E+2*h+1}, v20 offset:{128+h*64}")
    a("s_waitcnt lgkmcnt(0)")
    CR, CI = 56, 60
    TT = 64
    for h in range(2):
        lr, li, cr, ci = LAM+2*h, LAM+2*h+1, COEF+2*h, COEF+2*h+1
        er, ei = E+2*h, E+2*h+1
        a(f"v_mul_f32 v{TT}, v{cr}, v{er}\nv_fma_f32 v{TT}, -v{ci}, v{ei}, v{TT}\nv_mul_f32 v{TT+1}, v{cr}, v{ei}\nv_fmac_f32 v{TT+1}, v{ci}, v{er}")
        a(f"v_mul_f32 v{CR+2*h}, v{lr}, v{TT}\nv_fma_f32 v{CR+2*h}, -v{li}, v{TT+1}, v{CR+2*h}\nv_mul_f32 v{CI+2*h}, v{lr}, v{TT+1}\nv_fmac_f32 v{CI+2*h}, v{li}, v{TT}")
        a(f"v_mul_f32 v{CR+2*h+1}, v{lr}, v{CR+2*h}\nv_fma_f32 v{CR+2*h+1}, -v{li}, v{CI+2*h}, v{CR+2*h+1}\nv_mul_f32 v{CI+2*h+1}, v{lr}, v{CI+2*h}\nv_fmac_f32 v{CI+2*h+1}, v{li}, v{CR+2*h}")
    for b in range(4):
        for pr in range(2):
            for h in range(2):
                Rr, Ii = acc(b, h)+2*pr, acc(b, 2+h)+2*pr
                cf = vr(COEF+2*h, 2); o = TT+4*h
                a(f"v_pk_fma_f32 {vr(o,2)}, {cf}, {vr(Rr,2)}, {vr(CR+2*h,2)} {BL}")
                a(f"v_pk_fma_f32 {vr(o+2,2)}, {cf}, {vr(Ii,2)}, {vr(CI+2*h,2)} {BL}")
                a(f"v_pk_fma_f32 {vr(o,2)}, {cf}, {vr(Ii,2)}, {vr(o,2)} {BH} neg_lo:[1,0,0] neg_hi:[1,0,0]")
                a(f"v_pk_fma_f32 {vr(o+2,2)}, {cf}, {vr(Rr,2)}, {vr(o+2,2)} {BH}")
                if not (b == 3 and pr == 1):
                    l2 = vr(L2+2*h, 2); n_ = TT+8+4*h
                    a(f"v_pk_mul_f32 {vr(n_,2)}, {l2}, {vr(CR+2*h,2)} op_sel:[0,0] op_sel_hi:[0,1]")
                    a(f"v_pk_mul_f32 {vr(n_+2,2)}, {l2}, {vr(CI+2*h,2)} op_sel:[0,0] op_sel_hi:[0,1]")
                    a(f"v_pk_fma_f32 {vr(n_,2)}, {l2}, {vr(CI+2*h,2)}, {vr(n_,2)} {BH} neg_lo:[1,0,0] neg_hi:[1,0,0]")
                    a(f"v_pk_fma_f32 {vr(CI+2*h,2)}, {l2}, {vr(CR+2*h,2)}, {vr(n_+2,2)} {BH}")
                    a(f"v_mov_b32 v{CR+2*h}, v{n_}\nv_mov_b32 v{CR+2*h+1}, v{n_+1}")
                g = vr(G2+4*b+2*pr, 2)
                a(f"v_pk_mul_f32 {vr(o,2)}, {vr(o,2)}, {g}")
                a(f"v_pk_mul_f32 {vr(o+2,2)}, {vr(o+2,2)}, {g} neg_lo:[1,0] neg_hi:[1,0]")
                a(f"v_cvt_pk_bf16_f32 v{acc(b,h)+pr}, v{o}, v{o+1}\nv_cvt_pk_bf16_f32 v{acc(b,2+h)+pr}, v{o+2}, v{o+3}")
        for part in range(2):
            for h in range(2):
                a(f"ds_write_b64 v25, {vr(acc(b,2*part+h),2)} offset:{(b*2+part)*1024+h*512}")
    a("s_waitcnt lgkmcnt(0)")
    for b in range(4):
        for part in range(2):
            d = 96 + (b*2+part)*4 + 64
            a(f"ds_read_b64_tr_b16 {vr(d,2)}, v28 offset:{(b*2+part)*1024}\nds_read_b64_tr_b16 {vr(d+2,2)}, v28 offset:{(b*2+part)*1024+128}")
    for b in range(4):
        for part in range(2):
            d = 96 + (b*2+part)*4 + 64
            a(f"s_waitcnt lgkmcnt({14-2*(b*2+part)})")
            a(f"buffer_store_dwordx4 {vr(d)}, v24, {sr(S_WS)}, s{sSO+b} offen offset:{part*2048} {ST}")
    if dbg:
        stamp(6)
        a("s_waitcnt vmcnt(0)")
        stamp(7); stamp(8, True)
        a(f"s_mov_b32 s4, s94\ns_mov_b32 s5, s95\ns_mov_b32 s22, s96\ns_mov_b32 s23, s97")
        srd(a, S_A1, 34, 1 << 20, 0x3000000)
        a(f"s_lshl_b32 s{sT0}, s2, 9\ns_lshl_b32 s{sT1}, s{sW}, 7\ns_add_u32 s{sT0}, s{sT0}, s{sT1}\nv_mov_b32 v2, 0")
        for i in range(10):
            a(f"v_mov_b32 v4, s{4+2*i}\nv_mov_b32 v5, s{5+2*i}\nbuffer_store_dwordx2 v[4:5], v2, {sr(S_A1)}, s{sT0} offen offset:{i*8}")
    a(f"s_branch L_{name}_end")
    from k1_loader import gen_loader
    gen_loader(a, name, locals())
    a.label(f"L_{name}_end")
    a("s_endpgm")
```

```python
from common import *
import math
from k1 import XSL, W1B, WSL, TAB, EP, AGG, ECAR, LOG2E, f2u

def gen_loader(a, name, E):
    S_X, S_B, S_W1, S_WS, S_DBG, S_A1, S_A2, S_A3 = [E[k] for k in "S_X S_B S_W1 S_WS S_DBG S_A1 S_A2 S_A3".split()]
    sW, sI, sJ, sT0, sT1, sT2, sT3, sCNT, sODD = [E[k] for k in "sW sI sJ sT0 sT1 sT2 sT3 sCNT sODD".split()]
    ssm_consts, ssm_math = E['ssm_consts'], E['ssm_math']
    sMX, sMB, sMW, sOFF, sPART, sTOK = 77, 78, 79, 80, 81, 82
    sR = 84
    a.label(f"L_{name}_loader")
    a(f"s_sub_u32 s{sW}, s{sW}, 4")
    a(f"s_cmp_lt_u32 s{sW}, 2\ns_cselect_b32 s30, s10, s12\ns_cselect_b32 s31, s11, s13")
    srd(a, S_B, 30, 2048*1024)
    srd(a, S_DBG, 32, 256)
    VX, VBo, VW = 4, 12, 14
    a("v_lshrrev_b32 v16, 3, v1\nv_and_b32 v17, 7, v1\nv_xor_b32 v18, v16, v17\nv_lshlrev_b32 v18, 4, v18")
    a(f"v_lshrrev_b32 v19, 5, v1\nv_lshlrev_b32 v19, 4, v19\nv_and_b32 v20, 3, v16\nv_add_u32 v19, v19, v20")
    a(f"s_lshl_b32 s{sT0}, s{sI}, 8\ns_lshl_b32 s{sT1}, s{sW}, 6\ns_add_u32 s{sTOK}, s{sT0}, s{sT1}\nv_add_u32 v19, s{sTOK}, v19\nv_lshlrev_b32 v19, 11, v19\nv_add_u32 v19, v19, v18")
    for n in range(8):
        a(f"v_add_u32 v{VX+n}, {(32*(n&1)+4*(n>>1))*2048 - (n&3)*1024}, v19")
    a(f"s_lshl_b32 s{sT0}, s{sJ}, 5\ns_and_b32 s{sT1}, s{sW}, 1\ns_lshl_b32 s{sT1}, s{sT1}, 4\ns_add_u32 s{sT0}, s{sT0}, s{sT1}")
    a(f"v_add_u32 v19, s{sT0}, v16\nv_lshlrev_b32 v19, 11, v19\nv_add_u32 v{VBo}, v19, v18\nv_add_u32 v{VBo+1}, {8*2048-1024}, v{VBo}")
    a("v_mul_u32_u24 v19, 37, v1\nv_lshrrev_b32 v19, 9, v19\nv_mul_u32_u24 v20, 14, v19\nv_sub_u32 v20, v1, v20\nv_lshlrev_b32 v20, 4, v20")
    a(f"s_and_b32 s{sT0}, s{sW}, 1\ns_lshl_b32 s{sT0}, s{sT0}, 4\ns_lshr_b32 s{sT1}, s{sW}, 1\ns_lshl_b32 s{sT1}, s{sT1}, 2\ns_add_u32 s{sT0}, s{sT0}, s{sT1}")
    a(f"v_add_u32 v19, s{sT0}, v19\nv_mul_u32_u24 v19, 7168, v19\nv_add_u32 v19, v19, v20\ns_mul_i32 s{sT2}, s{sJ}, 224\nv_add_u32 v{VW}, s{sT2}, v19\nv_add_u32 v{VW+1}, {8*7168-896}, v{VW}")
    a(f"s_lshl_b32 s{sMX}, s{sW}, 13\ns_lshl_b32 s{sMB}, s{sW}, 11\ns_add_u32 s{sMB}, s{sMB}, 32768\ns_mul_i32 s{sMW}, s{sW}, 1792\ns_add_u32 s{sMW}, s{sMW}, {W1B}")
    cnt = [0]
    def vm(s): a(s); cnt[0] += 1
    mark = {}
    def wait(key):
        n = cnt[0] - mark[key]
        assert n <= 63
        a(f"s_waitcnt vmcnt({n})")
    def xb(T):
        sl = (T % 3)*XSL
        a(f"s_mov_b32 s{sOFF}, {T*128}")
        for hf in range(2):
            a(f"s_add_u32 m0, s{sMX}, {sl+hf*4096}\ns_nop 0")
            for n in range(4):
                vm(f"buffer_load_dwordx4 v{VX+hf*4+n}, {sr(S_X)}, s{sOFF} offen offset:{n*1024} lds")
        a(f"s_add_u32 m0, s{sMB}, {sl}\ns_nop 0")
        for n in range(2):
            vm(f"buffer_load_dwordx4 v{VBo+n}, {sr(S_B)}, s{sOFF} offen offset:{n*1024} lds")
    def w1(t):
        a(f"s_mov_b32 s{sOFF}, {t*229376}\ns_add_u32 m0, s{sMW}, {(t%5)*WSL}\ns_mov_b32 exec_hi, 0x00ffffff")
        for m in range(2):
            vm(f"buffer_load_dwordx4 v{VW+m}, {sr(S_W1)}, s{sOFF} offen offset:{m*896} lds")
        a("s_mov_b32 exec_hi, -1")
    xb(0); w1(0); w1(1); mark[-4] = cnt[0]
    XR, GW, WP = 32, 48, 56
    srd(a, S_A1, 28, 2048)
    a(f"s_lshl_b32 s{sT0}, s{sI}, 8\ns_lshl_b32 s{sT1}, s{sJ}, 3\ns_add_u32 s{sT0}, s{sT0}, s{sT1}\ns_lshl_b32 s{sT1}, s{sW}, 1\ns_add_u32 s{sT3}, s{sT0}, s{sT1}\ns_lshl_b32 s{sT0}, s{sT3}, 11")
    a("v_lshlrev_b32 v19, 5, v1")
    for r in range(2):
        for h in range(2):
            vm(f"buffer_load_dwordx4 {vr(XR+8*r+4*h)}, v19, {sr(S_X)}, s{sT0} offen offset:{r*2048+h*16}")
    for h in range(2):
        vm(f"buffer_load_dwordx4 {vr(GW+4*h)}, v19, {sr(S_A1)}, 0 offen offset:{h*16}")
    a(f"v_mul_u32_u24 v19, 7168, v16\nv_lshlrev_b32 v20, 3, v17\nv_add_u32 v19, v19, v20")
    a(f"s_mul_i32 s{sT0}, s{sI}, {128*7168}\ns_add_u32 s{sT0}, s{sT0}, s{sT2}\ns_mul_i32 s{sT1}, s{sW}, 56\ns_add_u32 s{sT0}, s{sT0}, s{sT1}")
    for m in range(16):
        vm(f"buffer_load_dwordx2 {vr(WP+2*m,2)}, v19, {sr(S_W1)}, s{sT0} offen")
        a(f"s_add_u32 s{sT0}, s{sT0}, {8*7168}")
    a(f"s_lshl_b32 s{sT0}, s{sJ}, 6\nv_and_b32 v19, 31, v1\nv_lshlrev_b32 v19, 1, v19\nv_add_u32 v19, s{sT0}, v19")
    LR, LI = 24, 25
    ssm_consts(19, 88, [(LR, LI, None, None)]); cnt[0] += 3
    xb(1); w1(2); mark[-3] = cnt[0]
    w1(3); mark[-2] = cnt[0]
    xb(2); w1(4); mark[-1] = cnt[0]
    wait(-4); a("s_barrier")
    C = []
    U, GU, T0 = 96, 128, 144
    def allsum(regs):
        L = []
        for perm in ("quad_perm:[1,0,3,2]", "quad_perm:[2,3,0,1]", "row_half_mirror", "row_mirror"):
            L.append("s_nop 1")
            for r in regs: L.append(f"v_add_f32_dpp v{r}, v{r}, v{r} {perm} row_mask:0xf bank_mask:0xf")
        L.append("s_nop 1")
        for k, r in enumerate(regs):
            for x in range(4): L.append(f"v_readlane_b32 s{sR+4*k+x}, v{r}, {16*x}")
        L.append("s_nop 2")
        for k, r in enumerate(regs):
            L.append(f"v_mov_b32 v{r}, s{sR+4*k}")
            for x in range(1, 4): L.append(f"v_add_f32 v{r}, s{sR+4*k+x}, v{r}")
        return L
    for k in range(8):
        C += [f"v_lshlrev_b32 v{GU+2*k}, 16, v{GW+k}", f"v_and_b32 v{GU+2*k+1}, 0xffff0000, v{GW+k}"]
        for r in range(2):
            C += [f"v_lshlrev_b32 v{U+16*r+2*k}, 16, v{XR+8*r+k}", f"v_and_b32 v{U+16*r+2*k+1}, 0xffff0000, v{XR+8*r+k}"]
    SM, SV, SG = T0, T0+2, T0+4
    for r in range(2):
        C.append(f"v_add_f32 v{SM+r}, v{U+16*r}, v{U+16*r+1}")
        for k in range(2, 16): C.append(f"v_add_f32 v{SM+r}, v{SM+r}, v{U+16*r+k}")
    C += allsum([SM, SM+1])
    for r in range(2): C.append(f"v_mul_f32 v{SM+r}, {hex(f2u(1/1024))}, v{SM+r}")
    for r in range(2):
        C.append(f"v_mov_b32 v{SG+r}, 0")
        for k in range(8):
            C += [f"v_mul_f32 v{T0+8}, v{U+16*r+2*k}, v{GU+2*k}", f"v_mul_f32 v{T0+9}, v{U+16*r+2*k+1}, v{GU+2*k+1}",
                  f"v_cvt_pk_bf16_f32 v{T0+8}, v{T0+8}, v{T0+9}", f"v_lshlrev_b32 v{T0+9}, 16, v{T0+8}", f"v_and_b32 v{T0+8}, 0xffff0000, v{T0+8}",
                  f"v_add_f32 v{SG+r}, v{SG+r}, v{T0+9}", f"v_add_f32 v{SG+r}, v{SG+r}, v{T0+8}"]
    for r in range(2):
        C.append(f"v_mov_b32 v{SV+r}, 0")
        for k in range(16):
            C += [f"v_sub_f32 v{T0+8}, v{U+16*r+k}, v{SM+r}", f"v_fmac_f32 v{SV+r}, v{T0+8}, v{T0+8}"]
    C += allsum([SV, SV+1]) + allsum([SG, SG+1])
    REC = T0+16
    def rbf(v): return [f"v_cvt_pk_bf16_f32 v{v}, v{v}, v{v}", f"v_lshlrev_b32 v{v}, 16, v{v}"]
    for r in range(2):
        o = REC+4*r
        C += rbf(SM+r)
        C += [f"v_mul_f32 v{SV+r}, {hex(f2u(1/1024))}, v{SV+r}"] + rbf(SV+r) + [f"v_add_f32 v{SV+r}, {hex(f2u(1e-5))}, v{SV+r}"] + rbf(SV+r)
        C += [f"v_sqrt_f32 v{SV+r}, v{SV+r}", "s_nop 1"] + rbf(SV+r) + [f"v_rcp_f32 v{o}, v{SV+r}", "s_nop 1", f"v_mul_f32 v{o+1}, v{o}, v{SM+r}"]
        C += rbf(SG+r) + [f"v_mul_f32 v{SG+r}, {hex(f2u(-LOG2E))}, v{SG+r}", f"v_exp_f32 v{SG+r}, v{SG+r}", "s_nop 1", f"v_add_f32 v{SG+r}, 1.0, v{SG+r}",
              f"v_rcp_f32 v{o+3}, v{SG+r}", "s_nop 1"] + rbf(o+3) + [f"v_sub_f32 v{o+2}, 1.0, v{o+3}"] + rbf(o+2)
    CS = T0+24
    for x in range(4): C.append(f"v_mov_b32 v{CS+x}, 0")
    for m in range(16):
        for h in range(2):
            C += [f"v_lshlrev_b32 v{T0+8}, 16, v{WP+2*m+h}", f"v_and_b32 v{T0+9}, 0xffff0000, v{WP+2*m+h}",
                  f"v_add_f32 v{CS+2*h}, v{CS+2*h}, v{T0+8}", f"v_add_f32 v{CS+2*h+1}, v{CS+2*h+1}, v{T0+9}"]
    C.append("s_nop 1")
    for x in range(4): C.append(f"v_add_f32_dpp v{CS+x}, v{CS+x}, v{CS+x} row_ror:8 row_mask:0xf bank_mask:0xf")
    for op in ("v_permlane16_swap_b32", "v_permlane32_swap_b32"):
        for x in range(4): C.append(f"v_mov_b32 v{T0+8+x}, v{CS+x}")
        C.append("s_nop 1")
        for x in range(4): C.append(f"{op} v{CS+x}, v{T0+8+x}")
        C.append("s_nop 1")
        for x in range(4): C.append(f"v_add_f32 v{CS+x}, v{CS+x}, v{T0+8+x}")
    C += ssm_math(88, [(LR, LI, None, None)])
    L16, L256 = 26, 28
    def sq(d, s): return [f"v_mul_f32 v{T0+8}, v{s}, v{s}", f"v_fma_f32 v{T0+8}, -v{s+1}, v{s+1}, v{T0+8}", f"v_mul_f32 v{d+1}, v{s}, v{s+1}", f"v_add_f32 v{d+1}, v{d+1}, v{d+1}", f"v_mov_b32 v{d}, v{T0+8}"]
    C += sq(L16, LR) + sq(L16, L16)*3 + sq(L256, L16) + sq(L256, L256)*3
    NCH = 5
    per = (len(C) + NCH - 1)//NCH
    chunks = [C[k*per:(k+1)*per] for k in range(NCH)]
    SC = "sc0 sc1"
    a(f"s_lshl_b32 s{sPART}, s2, 15\ns_lshl_b32 s{sT0}, s{sW}, 13\ns_add_u32 s{sPART}, s{sPART}, s{sT0}\ns_add_u32 s{sPART}, s{sPART}, {WS_PART}")
    a("v_lshlrev_b32 v21, 4, v1\nv_mov_b32 v200, -1\nv_mov_b32 v201, -1\nv_mov_b32 v202, -1\nv_mov_b32 v203, -1\nv_lshlrev_b32 v22, 2, v1")
    sLW = 83
    a(f"s_lshl_b32 s{sLW}, s{sI}, 5\ns_add_u32 s{sLW}, s{sLW}, s{sJ}")
    FL, MK = 204, 205
    ST4, CP, B1R = 208, 212, 244
    def extra(t):
        if t < NCH:
            a("s_nop 1")
            for s in chunks[t]: a(s)
        if t == 5:
            a(f"s_lshl_b32 s{sT0}, s{sT3}, 4\ns_add_u32 s{sT0}, s{sT0}, {WS_STAT}\nv_mov_b32 v19, 0\ns_mov_b64 exec, 1")
            for r in range(2): vm(f"buffer_store_dwordx4 {vr(REC+4*r)}, v19, {sr(S_WS)}, s{sT0} offen offset:{16*r} {SC}")
            a(f"s_lshl_b32 s{sT0}, s{sJ}, 3\ns_add_u32 s{sT0}, s{sT0}, s{sI}\ns_mul_i32 s{sT0}, s{sT0}, 448\ns_mul_i32 s{sT1}, s{sW}, 112\ns_add_u32 s{sT0}, s{sT0}, s{sT1}\ns_add_u32 s{sT0}, s{sT0}, {WS_CSUM}\ns_mov_b64 exec, 0x7f")
            vm(f"buffer_store_dwordx4 {vr(CS)}, v21, {sr(S_WS)}, s{sT0} offen {SC}")
            a(f"s_mov_b64 exec, -1\ns_lshl_b32 s{sT0}, s{sLW}, 8\ns_add_u32 s{sT0}, s{sT0}, {WS_AGG}")
            vm(f"buffer_store_dword v200, v22, {sr(S_WS)}, s{sT0} offen {SC}")
        if t == 8:
            a(f"v_mov_b32 v19, 0\nv_mov_b32 v20, 1\ns_mov_b64 exec, 1")
            vm(f"buffer_store_byte v20, v19, {sr(S_DBG)}, s{sLW} offen {SC}")
            a("s_mov_b64 exec, -1")
        if 9 <= t <= 12:
            for x in range(2):
                vm(f"buffer_store_dwordx4 v[200:203], v21, {sr(S_WS)}, s{sPART} offen offset:{x*1024}")
            a(f"s_add_u32 s{sPART}, s{sPART}, 2048")
        if t == 13:
            srd(a, S_A1, 24, 3584*2048); srd(a, S_A2, 14, 2048*1024); srd(a, S_A3, 16, 2048*1024)
            a(f"s_lshl_b32 s{sT0}, s2, 2\ns_add_u32 s{sT0}, s{sT0}, s{sW}\ns_mul_i32 s{sT1}, s{sT0}, {56*128}\ns_lshl_b32 s{sT0}, s{sT0}, 11")
            a("v_lshlrev_b32 v19, 7, v1\nv_lshlrev_b32 v20, 7, v2")
            vm(f"buffer_load_dword v23, v19, {sr(S_A1)}, s{sT1} offen")
            vm(f"buffer_load_dword v23, v20, {sr(S_A2)}, s{sT0} offen")
            vm(f"buffer_load_dword v23, v20, {sr(S_A3)}, s{sT0} offen")
        if t == 20:
            vm(f"buffer_load_dword v{FL}, v22, {sr(S_DBG)}, 0 offen {SC}")
            a(f"s_and_b32 s{sT0}, s{sJ}, 3\ns_lshl_b32 s{sT0}, s{sT0}, 3\ns_lshl_b32 s{sT0}, 1, s{sT0}\ns_lshr_b32 s{sT1}, s{sJ}, 2")
            a(f"v_mov_b32 v{MK}, 0\nv_mov_b32 v19, s{sT0}\nv_cmp_eq_u32 vcc, s{sT1}, v17\nv_cndmask_b32 v{MK}, v{MK}, v19, vcc")
            a(f"v_mov_b32 v19, 0x01010101\nv_cmp_eq_u32 vcc, s{sI}, v16\nv_cndmask_b32 v{MK}, v{MK}, v19, vcc")
        if t == 23:
            a(f"s_mov_b32 s{sCNT}, 30000")
            a.label(f"L_{name}_poll")
            a(f"v_and_b32 v19, v{FL}, v{MK}\nv_cmp_ne_u32 vcc, v19, v{MK}\ns_cmp_eq_u64 vcc, 0\ns_cbranch_scc1 L_{name}_pok")
            a(f"buffer_load_dword v{FL}, v22, {sr(S_DBG)}, 0 offen {SC}\ns_waitcnt vmcnt(0)")
            a(f"s_sub_u32 s{sCNT}, s{sCNT}, 1\ns_cmp_lg_u32 s{sCNT}, 0\ns_cbranch_scc1 L_{name}_poll")
            a.label(f"L_{name}_pok")
            a(f"s_lshl_b32 s{sT0}, s{sTOK}, 4\ns_add_u32 s{sT0}, s{sT0}, {WS_STAT}")
            vm(f"buffer_load_dwordx4 {vr(ST4)}, v21, {sr(S_WS)}, s{sT0} offen {SC}")
            a(f"s_mul_i32 s{sT0}, s{sJ}, {8*448}\ns_add_u32 s{sT0}, s{sT0}, {WS_CSUM}")
            srd(a, S_A1, 22, 7168)
            a(f"s_mov_b64 exec, 0xfffffff\nv_lshlrev_b32 v19, 3, v1\ns_mul_i32 s{sT1}, s{sJ}, 224")
            for x in range(8):
                vm(f"buffer_load_dwordx4 {vr(CP+4*x)}, v21, {sr(S_WS)}, s{sT0} offen offset:{x*448} {SC}")
            vm(f"buffer_load_dwordx2 {vr(B1R,2)}, v19, {sr(S_A1)}, s{sT1} offen")
            a("s_mov_b64 exec, -1")
        if t == 26:
            a(f"v_lshrrev_b32 v19, 2, v1\nv_and_b32 v19, 3, v19\nv_lshlrev_b32 v19, 4, v19\nv_lshlrev_b32 v20, 2, v3\nv_add_u32 v19, v19, v20\nv_and_b32 v20, 3, v1\nv_add_u32 v19, v19, v20\nv_lshlrev_b32 v19, 2, v19")
            a(f"s_lshl_b32 s{sT0}, s{sW}, 8\ns_add_u32 s{sT0}, s{sT0}, {TAB}\nv_add_u32 v19, s{sT0}, v19\nv_add_f32 v{ST4+3}, v{ST4+3}, v{ST4+3}")
            for p in range(4): a(f"ds_write_b32 v19, v{ST4+p} offset:{p*1024}")
            for x in range(1, 8):
                for r in range(4): a(f"v_add_f32 v{CP+r}, v{CP+r}, v{CP+4*x+r}")
            a(f"v_lshlrev_b32 v{CP+4}, 16, v{B1R}\nv_and_b32 v{CP+5}, 0xffff0000, v{B1R}\nv_lshlrev_b32 v{CP+6}, 16, v{B1R+1}\nv_and_b32 v{CP+7}, 0xffff0000, v{B1R+1}")
            a(f"v_subrev_u32 v19, 64, v21\nv_add_u32 v20, 384, v21\nv_cmp_gt_u32 vcc, 4, v1\nv_cndmask_b32 v19, v19, v20, vcc")
            a(f"s_cmp_eq_u32 s{sODD}, 0\ns_cselect_b64 vcc, -1, 0\nv_cndmask_b32 v19, v19, v21, vcc\nv_add_u32 v19, {TAB+4096}, v19")
            a(f"s_mov_b64 exec, 0xfffffff\nds_write_b128 v19, {vr(CP)}\nds_write_b128 v19, {vr(CP+4)} offset:448\ns_mov_b64 exec, -1\ns_waitcnt lgkmcnt(0)")
    for t in range(32):
        wait(t-3) if (t-3) in mark else None
        a("s_barrier")
        if t & 1 and (t >> 1)+3 <= 15: xb((t >> 1)+3)
        if t+5 <= 31: w1(t+5)
        extra(t)
        mark[t] = cnt[0]
    a(f"s_cmp_lg_u32 s{sW}, 0\ns_cbranch_scc1 L_{name}_end")
    a(f"v_and_b32 v19, 31, v1\nv_lshlrev_b32 v19, 2, v19\nv_add_u32 v20, {AGG}, v19")
    a("s_barrier")
    AG = 32
    for s in range(16):
        a(f"ds_read2_b32 {vr(AG+2*s,2)}, v20 offset0:{s*64} offset1:{s*64+32}") if s*64+32 < 256 else None
    for blk in range(1, 4):
        a(f"v_add_u32 v{100+blk}, {blk*1024}, v20")
        for s in range(4):
            a(f"ds_read2_b32 {vr(AG+2*(4*blk+s),2)}, v{100+blk} offset0:{s*64} offset1:{s*64+32}")
    a("s_waitcnt lgkmcnt(0)")
    P = 70
    def step(dst, src, lam, add):
        a(f"v_fma_f32 v{dst}, v{lam}, v{src}, v{add}\nv_fma_f32 v{dst+1}, v{lam}, v{src+1}, v{add+1}")
        a(f"v_fma_f32 v{dst}, -v{lam+1}, v{src+1}, v{dst}\nv_fmac_f32 v{dst+1}, v{lam+1}, v{src}")
    cur = AG
    for s in range(1, 16):
        d = P + 2*(s & 1)
        step(d, cur, L16, AG+2*s); cur = d
    a(f"v_lshlrev_b32 v21, 1, v19\ns_lshl_b32 s{sT0}, s{sLW}, 8\ns_add_u32 s{sT0}, s{sT0}, {WS_AGG}\ns_mov_b32 exec_hi, 0")
    a(f"buffer_store_dwordx2 {vr(cur,2)}, v21, {sr(S_WS)}, s{sT0} offen {SC}")
    PR = 80
    a(f"s_lshl_b32 s{sT0}, s{sJ}, 8\ns_add_u32 s{sT0}, s{sT0}, {WS_AGG}")
    a(f"v_mov_b32 v{P}, 0\nv_mov_b32 v{P+1}, 0")
    a(f"s_cmp_eq_u32 s{sI}, 0\ns_cbranch_scc1 L_{name}_cin")
    a(f"s_mov_b32 s{sCNT}, 30000")
    a.label(f"L_{name}_gat")
    a(f"s_mov_b32 s{sT1}, s{sT0}")
    for x in range(7):
        a(f"buffer_load_dwordx2 {vr(PR+2*x,2)}, v21, {sr(S_WS)}, s{sT1} offen {SC}\ns_add_u32 s{sT1}, s{sT1}, 8192")
    a("s_waitcnt vmcnt(0)\ns_mov_b64 s[86:87], 0")
    for x in range(7):
        a(f"v_cmp_eq_u32 vcc, -1, v{PR+2*x}\nv_cmp_eq_u32 s[84:85], -1, v{PR+2*x+1}\ns_or_b64 vcc, vcc, s[84:85]")
        a(f"s_cmp_gt_u32 s{sI}, {x}\ns_cselect_b64 vcc, vcc, 0\ns_or_b64 s[86:87], s[86:87], vcc")
    a(f"s_cmp_eq_u64 s[86:87], 0\ns_cbranch_scc1 L_{name}_gok")
    a(f"s_sub_u32 s{sCNT}, s{sCNT}, 1\ns_cmp_lg_u32 s{sCNT}, 0\ns_cbranch_scc1 L_{name}_gat")
    a.label(f"L_{name}_gok")
    for x in range(7):
        step(P+2, P, L256, PR+2*x)
        a(f"v_mov_b32 v{P}, v{P+2}\nv_mov_b32 v{P+1}, v{P+3}")
        if x < 6: a(f"s_cmp_eq_u32 s{sI}, {x+1}\ns_cbranch_scc1 L_{name}_cin")
    a.label(f"L_{name}_cin")
    for blk in range(4): a(f"v_add_u32 v{100+blk}, {ECAR+blk*1024}, v19")
    cur = P
    for s in range(16):
        a(f"ds_write2_b32 v{100+(s>>2)}, v{cur}, v{cur+1} offset0:{(s&3)*64} offset1:{(s&3)*64+32}")
        if s < 15:
            d = P + 2*((s+1) & 1)
            step(d, cur, L16, AG+2*s); cur = d
    a("s_waitcnt lgkmcnt(0)\ns_barrier")
```

```python
from common import *

NS = 5
SLOT = 32768
TST = 44
NH = 56

def gen_k2(a, name="k2_kernel", dbg=False, atomic=None):
    def stamp(i, real=False):
        if dbg: a(f"{'s_memrealtime' if real else 's_memtime'} s[{80+2*i}:{81+2*i}]\ns_waitcnt lgkmcnt(0)")
    S_AP, S_W2, S_CRE, S_CIM, S_X, S_OUT, S_PART, S_G, S_DS, S_B2 = 20, 24, 28, 32, 36, 40, 44, 48, 52, 56
    sWAVE, sROLE, sMT, sNT, sS0 = 60, 61, 62, 63, 64
    sCNT, sSLOT, sNSLOT, sT0, sT1, sT2, sAOFF, sBOFF, sSTG, sM0A, sM0B = 65, 66, 67, 68, 69, 70, 71, 72, 73, 74, 75
    sTILE = 76
    a(f".globl {name}\n.p2align 8\n.type {name},@function")
    a.label(name)
    a(f"s_cmp_ge_u32 s2, 256\ns_cbranch_scc1 L_{name}_end")
    stamp(0); stamp(5, True)
    a(f"s_load_dwordx2 s[4:5], s[0:1], {KA['x']}")
    a(f"s_load_dwordx4 s[8:11], s[0:1], {KA['cre']}")
    a(f"s_load_dwordx2 s[6:7], s[0:1], {KA['dskip']}")
    a(f"s_load_dwordx4 s[12:15], s[0:1], {KA['w2']}")
    a(f"s_load_dwordx2 s[16:17], s[0:1], {KA['out']}")
    a(f"s_load_dwordx2 s[18:19], s[0:1], {KA['ws']}")
    a("v_and_b32 v1, 63, v0\nv_lshrrev_b32 v2, 6, v0")
    a("s_nop 0")
    a(f"v_readfirstlane_b32 s{sWAVE}, v2")
    a(f"s_and_b32 s{sT0}, s2, 7\ns_lshr_b32 s{sT1}, s2, 3")
    a(f"s_and_b32 s{sROLE}, s{sT0}, 1")
    a(f"s_lshr_b32 s{sT0}, s{sT0}, 1\ns_lshl_b32 s{sT0}, s{sT0}, 2\ns_and_b32 s{sT2}, s{sT1}, 3\ns_add_u32 s{sMT}, s{sT0}, s{sT2}")
    a(f"s_lshr_b32 s{sNT}, s{sT1}, 2")
    a(f"s_mul_i32 s{sS0}, s{sROLE}, {TST}")
    a(f"s_lshl_b32 s{sTILE}, s{sMT}, 3\ns_add_u32 s{sTILE}, s{sTILE}, s{sNT}")
    a("s_waitcnt lgkmcnt(0)")
    srd(a, S_AP, 18, AP_BYTES)
    srd(a, S_W2, 12, 3584*1024*2)
    srd(a, S_CRE, 8, 1024*1024*2)
    srd(a, S_CIM, 10, 1024*1024*2)
    srd(a, S_X, 4, 2048*1024*2)
    srd(a, S_OUT, 16, 2048*1024*4)
    srd(a, S_PART, 18, 256*32768, WS_PART)
    srd(a, S_G, 18, 2048*16, WS_STAT)
    srd(a, S_DS, 6, 2048)
    srd(a, S_B2, 14, 2048)
    a(f"s_cmp_ge_u32 s{sWAVE}, 4\ns_cbranch_scc1 L_{name}_loader")

    ACC = 128
    F = [64, 96]
    vA, vBH, vBh = 4, 5, 9
    cA, cBH, cBh = 11, 12, 16
    nA, nBH, nBh = 18, 19, 23
    EX = 192
    EDS, EB2, EG = 208, 216, 224
    RX = 26
    def acc(mb, nb): return ACC + (mb*4+nb)*4
    a(f"s_and_b32 s{sT0}, s{sWAVE}, 1\ns_lshr_b32 s{sT1}, s{sWAVE}, 1")
    a("v_and_b32 v2, 15, v1\nv_lshrrev_b32 v3, 4, v1")
    a(f"s_lshl_b32 s{sT2}, s{sT0}, 13\nv_lshlrev_b32 v{vA}, 4, v1\nv_add_u32 v{vA}, s{sT2}, v{vA}")
    a("v_lshrrev_b32 v26, 2, v1")
    a("v_and_b32 v27, 7, v26")
    a("v_and_b32 v28, 3, v1\nv_lshlrev_b32 v28, 3, v28")
    a("v_lshlrev_b32 v29, 8, v26\nv_add_u32 v29, v29, v28\nv_add_u32 v29, 0x4000, v29")
    a(f"s_lshl_b32 s{sT2}, s{sT1}, 2")
    for nb in range(4):
        a(f"s_add_u32 s{sCNT}, s{sT2}, {nb}\nv_xor_b32 v30, s{sCNT}, v27\nv_lshlrev_b32 v30, 5, v30\nv_add_u32 v{vBH+nb}, v29, v30")
    a(f"s_lshl_b32 s{sT2}, s{sT1}, 6\nv_add_u32 v30, s{sT2}, v2\nv_lshlrev_b32 v30, 7, v30\nv_add_u32 v30, 0x4000, v30")
    a("v_and_b32 v31, 7, v2")
    for kk in range(2):
        a(f"v_add_u32 v32, {4*kk}, v3\nv_xor_b32 v32, v32, v31\nv_lshlrev_b32 v32, 4, v32\nv_add_u32 v{vBh+kk}, v30, v32")
    a(f"s_lshl_b32 s{sT2}, s{sMT}, 7\ns_lshl_b32 s{sCNT}, s{sT0}, 6\ns_add_u32 s{sT2}, s{sT2}, s{sCNT}\ns_lshl_b32 s{sCNT}, s{sROLE}, 3\ns_add_u32 s{sT2}, s{sT2}, s{sCNT}")
    a(f"v_lshrrev_b32 v33, 2, v2\nv_lshlrev_b32 v33, 4, v33\nv_and_b32 v34, 3, v2\nv_add_u32 v33, v33, v34\nv_add_u32 v33, s{sT2}, v33")
    a(f"s_lshl_b32 s{sT2}, s{sNT}, 7\ns_lshl_b32 s{sCNT}, s{sT1}, 6\ns_add_u32 s{sT2}, s{sT2}, s{sCNT}")
    a(f"v_lshlrev_b32 v34, 2, v3\nv_add_u32 v34, s{sT2}, v34")
    VOX, VOO = 226, 227
    a(f"v_lshlrev_b32 v35, 11, v33\nv_lshlrev_b32 v36, 1, v34\nv_add_u32 v{VOX}, v35, v36")
    a(f"v_lshlrev_b32 v{VOO}, 1, v{VOX}")
    a(f"v_lshlrev_b32 v37, 4, v33")
    a(f"s_mov_b32 s{sT2}, 8192")
    for j in range(2):
        for nb in range(4):
            a(f"buffer_load_dwordx2 {vr(EX+(j*4+nb)*2,2)}, v{VOX}, {sr(S_X)}, {'s'+str(sT2) if j else '0'} offen offset:{nb*32}")
        a(f"buffer_load_dword v{EG+j}, v37, {sr(S_G)}, 0 offen offset:{j*64+12}")
    for nb in range(4):
        a(f"buffer_load_dwordx2 {vr(EDS+nb*2,2)}, v36, {sr(S_DS)}, 0 offen offset:{nb*32}")
        a(f"buffer_load_dwordx2 {vr(EB2+nb*2,2)}, v36, {sr(S_B2)}, 0 offen offset:{nb*32}")
    for r in range(64): a(f"v_mov_b32 v{ACC+r}, 0")
    a(f"s_mov_b32 s{sSLOT}, 0")

    q = LgkmQ(a)
    def set_addr(dA, dBH, dBh, sreg, typ):
        L = [f"v_add_u32 v{dA}, s{sreg}, v{vA}"]
        if typ == 'H': L += [f"v_add_u32 v{dBH+i}, s{sreg}, v{vBH+i}" for i in range(4)]
        else: L += [f"v_add_u32 v{dBh+i}, s{sreg}, v{vBh+i}" for i in range(2)]
        return L
    def reads(fs, kk, typ, rA, rBH, rBh):
        R = []
        def ra(mb): return [(('A',fs,mb), f"ds_read_b128 {vr(F[fs]+mb*4)}, v{rA} offset:{mb*2048+kk*1024}")]
        def rb(nb):
            if typ == 'H':
                return [(('Bx',fs,nb), f"ds_read_b64_tr_b16 {vr(F[fs]+16+nb*4,2)}, v{rBH+nb} offset:{kk*8192}"),
                        (('B',fs,nb), f"ds_read_b64_tr_b16 {vr(F[fs]+16+nb*4+2,2)}, v{rBH+nb} offset:{kk*8192+4096}")]
            return [(('B',fs,nb), f"ds_read_b128 {vr(F[fs]+16+nb*4)}, v{rBh+kk} offset:{nb*2048}")]
        R += ra(0) + rb(0) + ra(1) + ra(2) + ra(3) + rb(1) + rb(2) + rb(3)
        return R
    def phase(fs, fill):
        fi = 0
        for nb in range(4):
            for mb in range(4):
                q.need({('A',fs,mb), ('B',fs,nb)})
                if atomic is not None: a(f"v_mfma_f32_16x16x32_bf16 {vr(acc(mb,nb))}, {vr(F[fs]+mb*4)}, {vr(F[fs]+16+nb*4)}, {vr(acc(mb,nb))}")
                else: a(f"v_mfma_f32_16x16x32_bf16 {vr(acc(mb,nb))}, {vr(F[fs]+16+nb*4)}, {vr(F[fs]+mb*4)}, {vr(acc(mb,nb))}")
                k = 0
                while fi < len(fill) and k < 2:
                    it = fill[fi]; fi += 1; k += 1
                    if it[0] == 'r': a(it[2]); q.issue(it[1])
                    else: a(it[1])
                    if it[0] == 'r': k += 0
        assert fi == len(fill), (fi, len(fill))
    def next_slot():
        return [('i', f"s_add_u32 s{sNSLOT}, s{sSLOT}, {SLOT}"), ('i', f"s_cmp_eq_u32 s{sNSLOT}, {NS*SLOT}"), ('i', f"s_cselect_b32 s{sNSLOT}, 0, s{sNSLOT}")]
    def stage(typ, nxt, barrier=True):
        fill = [('r',)+r for r in reads(1, 1, typ, cA, cBH, cBh)]
        if nxt: fill += next_slot() + [('i', s) for s in set_addr(nA, nBH, nBh, sNSLOT, nxt)]
        phase(0, fill)
        fill = []
        if nxt:
            fill += [('r',)+r for r in reads(0, 0, nxt, nA, nBH, nBh)]
            fill += [('i', f"s_mov_b32 s{sSLOT}, s{sNSLOT}"), ('i', f"v_mov_b32 v{cA}, v{nA}")]
            if nxt == 'H': fill += [('i', f"v_mov_b32 v{cBH+i}, v{nBH+i}") for i in range(4)]
            else: fill += [('i', f"v_mov_b32 v{cBh+i}, v{nBh+i}") for i in range(2)]
        phase(1, fill)
        if barrier: a("s_barrier")
    for s in set_addr(cA, cBH, cBh, sSLOT, 'H'): a(s)
    a("s_barrier")
    stamp(1)
    for tag, ins in reads(0, 0, 'H', cA, cBH, cBh):
        a(ins); q.issue(tag)
    a("s_barrier")
    nH1 = NH - TST
    a(f"s_cmp_eq_u32 s{sROLE}, 0\ns_cselect_b32 s{sCNT}, {TST-2}, {nH1-1}")
    saved = list(q.q)
    a.label(f"L_{name}_hh")
    stage('H', 'H')
    assert q.q == saved, (q.q, saved)
    a(f"s_sub_u32 s{sCNT}, s{sCNT}, 1\ns_cmp_lg_u32 s{sCNT}, 0\ns_cbranch_scc1 L_{name}_hh")
    a(f"s_cmp_eq_u32 s{sROLE}, 0\ns_cbranch_scc0 L_{name}_r1")
    stage('H', 'H', barrier=False)
    stage('H', None, barrier=False)
    a(f"s_branch L_{name}_epi")
    a.label(f"L_{name}_r1")
    q.q = list(saved)
    stage('H', 'h')
    saved2 = list(q.q)
    a(f"s_mov_b32 s{sCNT}, {32-2}")
    a.label(f"L_{name}_ll")
    stage('h', 'h')
    assert q.q == saved2
    a(f"s_sub_u32 s{sCNT}, s{sCNT}, 1\ns_cmp_lg_u32 s{sCNT}, 0\ns_cbranch_scc1 L_{name}_ll")
    stage('h', 'h', barrier=False)
    stage('h', None, barrier=False)
    a.label(f"L_{name}_epi")
    stamp(2)
    if atomic is not None:
        a(f"s_and_b32 s{sT0}, s{sWAVE}, 1\ns_lshr_b32 s{sT1}, s{sWAVE}, 1")
        a(f"s_lshl_b32 s{sT2}, s{sMT}, 7\ns_lshl_b32 s{sCNT}, s{sT0}, 6\ns_add_u32 s{sT2}, s{sT2}, s{sCNT}")
        a(f"v_and_b32 v2, 15, v1\nv_lshrrev_b32 v3, 4, v1\nv_lshlrev_b32 v3, 2, v3\nv_add_u32 v3, s{sT2}, v3\nv_lshlrev_b32 v3, 12, v3")
        a(f"s_lshl_b32 s{sT2}, s{sNT}, 7\ns_lshl_b32 s{sCNT}, s{sT1}, 6\ns_add_u32 s{sT2}, s{sT2}, s{sCNT}\nv_add_u32 v2, s{sT2}, v2\nv_lshlrev_b32 v2, 2, v2\nv_add_u32 v2, v2, v3")
        a("s_nop 7\ns_nop 7")
        for mb in range(4):
            for r in range(4):
                a(f"s_mov_b32 s{sT2}, {(mb*16+r)*4096}")
                for nb in range(4):
                    a(f"buffer_atomic_add_f32 v{acc(mb,nb)+r}, v2, {sr(S_OUT)}, s{sT2} offen offset:{nb*64} {atomic}")
        stamp(3)
        a(f"s_branch L_{name}_fin")
    a(f"s_lshl_b32 s{sT0}, s{sTILE}, 1\ns_add_u32 s{sT1}, s{sT0}, s{sROLE}\ns_lshl_b32 s{sT1}, s{sT1}, 15\ns_lshl_b32 s{sT2}, s{sWAVE}, 13\ns_add_u32 s{sT1}, s{sT1}, s{sT2}")
    a(f"s_xor_b32 s{sCNT}, s{sROLE}, 1\ns_add_u32 s{sT0}, s{sT0}, s{sCNT}\ns_lshl_b32 s{sT0}, s{sT0}, 15\ns_add_u32 s{sT0}, s{sT0}, s{sT2}")
    a(f"s_add_u32 s{sAOFF}, s{sT1}, 4096\ns_add_u32 s{sBOFF}, s{sT0}, 4096")
    a("v_lshlrev_b32 v2, 4, v1")
    a("s_nop 7\ns_nop 7")
    a(f"s_cmp_eq_u32 s{sROLE}, 0\ns_cbranch_scc0 L_{name}_send1")
    def send(mbs):
        for j, mb in enumerate(mbs):
            for nb in range(4):
                a(f"buffer_store_dwordx4 {vr(acc(mb,nb))}, v2, {sr(S_PART)}, s{sT1 if j==0 else sAOFF} offen offset:{nb*1024} sc0 sc1")
    send((2,3))
    a(f"s_branch L_{name}_sent")
    a.label(f"L_{name}_send1")
    send((0,1))
    a("s_nop 1")
    for r in range(32): a(f"v_mov_b32 v{ACC+r}, v{ACC+32+r}")
    a.label(f"L_{name}_sent")
    a("s_waitcnt vmcnt(8)")
    T = 64
    for j in range(2):
        a(f"v_sub_f32 v{T}, 1.0, v{EG+j}\nv_cvt_pk_bf16_f32 v{T}, v{T}, v{T}\nv_lshlrev_b32 v{T+1+j}, 16, v{T}")
    for nb in range(4):
        for h in range(2):
            a(f"v_lshlrev_b32 v{T+4+2*h}, 16, v{EDS+nb*2+h}\nv_and_b32 v{T+5+2*h}, 0xffff0000, v{EDS+nb*2+h}")
            a(f"v_lshlrev_b32 v{T+8+2*h}, 16, v{EB2+nb*2+h}\nv_and_b32 v{T+9+2*h}, 0xffff0000, v{EB2+nb*2+h}")
        for j in range(2):
            xr = EX+(j*4+nb)*2
            for h in range(2):
                a(f"v_lshlrev_b32 v{T+12+2*h}, 16, v{xr+h}\nv_and_b32 v{T+13+2*h}, 0xffff0000, v{xr+h}")
            for r in range(4):
                a(f"v_mul_f32 v{T+12+r}, v{T+12+r}, v{T+4+r}")
            a(f"v_cvt_pk_bf16_f32 v{T+16}, v{T+12}, v{T+13}\nv_cvt_pk_bf16_f32 v{T+17}, v{T+14}, v{T+15}")
            for h in range(2):
                a(f"v_lshlrev_b32 v{T+12+2*h}, 16, v{T+16+h}\nv_and_b32 v{T+13+2*h}, 0xffff0000, v{T+16+h}")
            for r in range(4):
                a(f"v_fmac_f32 v{acc(j,nb)+r}, v{EG+j}, v{T+12+r}")
                a(f"v_fmac_f32 v{acc(j,nb)+r}, v{T+1+j}, v{T+8+r}")
    a(f"s_mov_b32 s{sCNT}, 20000")
    a.label(f"L_{name}_rx")
    for j in range(2):
        for nb in range(4):
            a(f"buffer_load_dwordx4 {vr(RX+(j*4+nb)*4)}, v2, {sr(S_PART)}, s{sT0 if j==0 else sBOFF} offen offset:{nb*1024} sc0 sc1")
    a("s_waitcnt vmcnt(0)")
    a("s_mov_b64 s[78:79], 0")
    for r in range(32):
        a(f"v_cmp_eq_u32 vcc, -1, v{RX+r}\ns_or_b64 s[78:79], s[78:79], vcc")
    a(f"s_cmp_eq_u64 s[78:79], 0\ns_cbranch_scc1 L_{name}_rxok")
    a(f"s_sub_u32 s{sCNT}, s{sCNT}, 1\ns_cmp_lg_u32 s{sCNT}, 0\ns_cbranch_scc1 L_{name}_rx")
    a.label(f"L_{name}_rxok")
    stamp(3)
    a(f"s_mov_b32 s{sT2}, 16384")
    for j in range(2):
        for nb in range(4):
            for r in range(4):
                a(f"v_add_f32 v{acc(j,nb)+r}, v{acc(j,nb)+r}, v{RX+(j*4+nb)*4+r}")
            a(f"buffer_store_dwordx4 {vr(acc(j,nb))}, v{VOO}, {sr(S_OUT)}, {'s'+str(sT2) if j else '0'} offen offset:{nb*64}")
    a.label(f"L_{name}_fin")
    if dbg:
        a("s_waitcnt vmcnt(0)")
        stamp(4); stamp(6, True)
        srd(a, S_PART, 18, 1<<20, 0x3000000)
        a(f"s_lshl_b32 s{sT0}, s2, 8\ns_lshl_b32 s{sT1}, s{sWAVE}, 6\ns_add_u32 s{sT0}, s{sT0}, s{sT1}\nv_mov_b32 v2, 0")
        for i in range(7):
            a(f"v_mov_b32 v4, s{80+2*i}\nv_mov_b32 v5, s{81+2*i}\nbuffer_store_dwordx2 v[4:5], v2, {sr(S_PART)}, s{sT0} offen offset:{i*8}")
    a(f"s_branch L_{name}_end")

    a.label(f"L_{name}_loader")
    sL = sT0
    a(f"s_sub_u32 s{sWAVE}, s{sWAVE}, 4")
    vA0, vA1, vH, vh = 4, 5, 6, 10
    a(f"v_lshlrev_b32 v{vA0}, 4, v1\nv_add_u32 v{vA1}, {NKB*1024-2048}, v{vA0}")
    a("v_lshrrev_b32 v20, 4, v1\nv_and_b32 v21, 15, v1\nv_lshrrev_b32 v22, 1, v21\nv_and_b32 v23, 1, v21\nv_lshlrev_b32 v23, 4, v23")
    a(f"s_lshl_b32 s{sT1}, s{sWAVE}, 4")
    for j in range(4):
        a(f"s_add_u32 s{sT2}, s{sT1}, {4*j}\nv_add_u32 v24, s{sT2}, v20\nv_and_b32 v25, 7, v24\nv_xor_b32 v25, v25, v22\nv_lshlrev_b32 v25, 5, v25")
        a(f"v_lshlrev_b32 v24, 11, v24\nv_add_u32 v24, v24, v25\nv_add_u32 v24, v24, v23\nv_subrev_u32 v{vH+j}, {j*1024}, v24")
    a("v_lshrrev_b32 v20, 3, v1\nv_and_b32 v21, 7, v1\nv_xor_b32 v21, v21, v20\nv_lshlrev_b32 v21, 4, v21")
    a(f"s_lshl_b32 s{sT1}, s{sNT}, 7\ns_lshl_b32 s{sT2}, s{sWAVE}, 5\ns_add_u32 s{sT1}, s{sT1}, s{sT2}")
    for j in range(4):
        a(f"s_add_u32 s{sT2}, s{sT1}, {8*j}\nv_add_u32 v24, s{sT2}, v20\nv_lshlrev_b32 v24, 11, v24\nv_add_u32 v24, v24, v21\nv_subrev_u32 v{vh+j}, {j*1024}, v24")
    a(f"s_lshl_b32 s{sT1}, s{sMT}, 3\ns_lshl_b32 s{sT2}, s{sWAVE}, 1\ns_add_u32 s{sT1}, s{sT1}, s{sT2}\ns_mul_i32 s{sAOFF}, s{sT1}, {NKB*1024}")
    a(f"s_lshl_b32 s{sT2}, s{sS0}, 11\ns_add_u32 s{sAOFF}, s{sAOFF}, s{sT2}")
    a(f"s_mov_b32 s{sSTG}, s{sS0}")
    a(f"s_lshl_b32 s{sM0A}, s{sWAVE}, 12")
    a(f"s_add_u32 s{sM0B}, s{sM0A}, 16384")
    a(f"s_mov_b32 s{sSLOT}, 0")
    uid = [0]
    def issue():
        uid[0] += 1; u = uid[0]
        a(f"s_add_u32 m0, s{sSLOT}, s{sM0A}")
        a("s_nop 0")
        a(f"buffer_load_dwordx4 v{vA0}, {sr(S_AP)}, s{sAOFF} offen lds")
        a(f"buffer_load_dwordx4 v{vA0}, {sr(S_AP)}, s{sAOFF} offen offset:1024 lds")
        a(f"buffer_load_dwordx4 v{vA1}, {sr(S_AP)}, s{sAOFF} offen offset:2048 lds")
        a(f"buffer_load_dwordx4 v{vA1}, {sr(S_AP)}, s{sAOFF} offen offset:3072 lds")
        a(f"s_add_u32 m0, s{sSLOT}, s{sM0B}")
        a(f"s_cmp_ge_u32 s{sSTG}, {NH}\ns_cbranch_scc1 L_{name}_lh{u}")
        a(f"s_lshl_b32 s{sBOFF}, s{sSTG}, 17\ns_lshl_b32 s{sT2}, s{sNT}, 8\ns_add_u32 s{sBOFF}, s{sBOFF}, s{sT2}")
        for j in range(4):
            a(f"buffer_load_dwordx4 v{vH+j}, {sr(S_W2)}, s{sBOFF} offen offset:{j*1024} lds")
        a(f"s_branch L_{name}_ld{u}")
        a.label(f"L_{name}_lh{u}")
        a(f"s_sub_u32 s{sT2}, s{sSTG}, {NH}\ns_lshr_b32 s{sBOFF}, s{sT2}, 1\ns_lshl_b32 s{sBOFF}, s{sBOFF}, 7\ns_and_b32 s{sT2}, s{sT2}, 1")
        a(f"s_cmp_eq_u32 s{sT2}, 0\ns_cbranch_scc0 L_{name}_li{u}")
        for j in range(4):
            a(f"buffer_load_dwordx4 v{vh+j}, {sr(S_CRE)}, s{sBOFF} offen offset:{j*1024} lds")
        a(f"s_branch L_{name}_ld{u}")
        a.label(f"L_{name}_li{u}")
        for j in range(4):
            a(f"buffer_load_dwordx4 v{vh+j}, {sr(S_CIM)}, s{sBOFF} offen offset:{j*1024} lds")
        a.label(f"L_{name}_ld{u}")
        a(f"s_add_u32 s{sAOFF}, s{sAOFF}, 2048\ns_add_u32 s{sSTG}, s{sSTG}, 1")
        a(f"s_add_u32 s{sSLOT}, s{sSLOT}, {SLOT}\ns_cmp_eq_u32 s{sSLOT}, {NS*SLOT}\ns_cselect_b32 s{sSLOT}, 0, s{sSLOT}")
    a(f"s_mov_b32 s{sCNT}, {NS}")
    a.label(f"L_{name}_lpro")
    issue()
    a(f"s_sub_u32 s{sCNT}, s{sCNT}, 1\ns_cmp_lg_u32 s{sCNT}, 0\ns_cbranch_scc1 L_{name}_lpro")
    a(f"s_waitcnt vmcnt({8*(NS-1)})\ns_barrier")
    a(f"s_waitcnt vmcnt({8*(NS-2)})\ns_barrier")
    a(f"s_waitcnt vmcnt({8*(NS-3)})\ns_barrier")
    a(f"s_mov_b32 s{sCNT}, {TST-NS}")
    a.label(f"L_{name}_lloop")
    issue()
    a(f"s_waitcnt vmcnt({8*(NS-3)})\ns_barrier")
    a(f"s_sub_u32 s{sCNT}, s{sCNT}, 1\ns_cmp_lg_u32 s{sCNT}, 0\ns_cbranch_scc1 L_{name}_lloop")
    for t in range(TST-NS+1, TST-2):
        a(f"s_waitcnt vmcnt({8*max(0, TST-1-(t+2))})\ns_barrier")
    a.label(f"L_{name}_end")
    a("s_endpgm")

if __name__ == "__main__":
    a = Asm()
    hdr = "; @launch kernel=k2_kernel grid=(256,1,1) block=(512,1,1) lds=163840\n"
    hdr += '.amdgcn_target "amdgcn-amd-amdhsa--gfx950"\n.text\n'
    import sys
    gen_k2(a, dbg=len(sys.argv)>1, atomic=(sys.argv[2] if len(sys.argv)>2 else None))
    s = hdr + a.text() + '.section .rodata,"a"\n' + kdesc("k2_kernel")
    open("k2_only.s" if len(sys.argv)<4 else sys.argv[3], "w").write(s)
```

```python
import sys
from common import *
from k1 import gen_k1
from k2 import gen_k2
def build(path, which, dbg=False):
    a = Asm()
    hdr = ""
    for k in which: hdr += f"; @launch kernel={k}_kernel grid=(256,1,1) block=(512,1,1) lds=163840\n"
    hdr += '.amdgcn_target "amdgcn-amd-amdhsa--gfx950"\n.text\n'
    if "k1" in which: gen_k1(a, dbg=dbg)
    if "k2" in which: gen_k2(a, dbg=dbg)
    s = hdr + a.text() + '.section .rodata,"a"\n' + "".join(kdesc(k+"_kernel") for k in which)
    open(path, "w").write(s)
if __name__ == "__main__":
    build(sys.argv[1], sys.argv[2].split(","), len(sys.argv) > 3)
```
